```python
import torch

def _softmax(x, axis=-1):
    return torch.softmax(x, dim=axis)
def _gelu(x):
    return torch.nn.functional.gelu(x, approximate="tanh")
def _silu(x):
    return torch.nn.functional.silu(x)
def _sigmoid(x):
    return torch.sigmoid(x)
def _layernorm(x, axis=-1, eps=1e-5):
    m = x.mean(dim=axis, keepdim=True)
    v = x.var(dim=axis, keepdim=True, unbiased=False)
    return (x - m) / torch.sqrt(v + eps)
def _scatter_add(tgt, idx, src, axis=0):
    return tgt.clone().index_add_(axis, idx, src)
def _segment_sum(src, seg, n):
    out = torch.zeros((n,) + src.shape[1:], dtype=src.dtype)
    return out.index_add_(0, seg, src)
def _pad(x, pw):
    flat = tuple(v for pair in reversed(pw) for v in pair)
    return torch.nn.functional.pad(x, flat)

kernel_name = 'standalone__gqa_softmax__near_ridge'

def setup_inputs():

    _w = (lambda a: (lambda t: t.to(torch.bfloat16) if t.is_floating_point() else t)(torch.as_tensor(a)))
    B, Hq, Hkv, Sq, Sk, D = 8, 32, 8, 128, 2048, 128
    return {
        "q": _w((lambda *s: torch.randn(*s, dtype=torch.bfloat16) * 0.8)(B, Hq, Sq, D)),
        "k": _w((lambda *s: torch.randn(*s, dtype=torch.bfloat16) * 0.8)(B, Hkv, Sk, D)),
        "v": _w((lambda *s: torch.randn(*s, dtype=torch.bfloat16) * 0.05)(B, Hkv, Sk, D)),
    }

def reference(q, k, v):
    B, Hq, Sq, D = q.shape
    Hkv = k.shape[1]
    rep = Hq // Hkv
    k = (lambda x, n, axis: torch.repeat_interleave(x, n, dim=axis))(k, rep, axis=1)
    v = (lambda x, n, axis: torch.repeat_interleave(x, n, dim=axis))(v, rep, axis=1)
    scale = D ** -0.5
    scores = torch.einsum("bhqd,bhkd->bhqk", q, k) * scale
    p = _softmax(scores, axis=-1)
    return torch.einsum("bhqk,bhkd->bhqd", p, v)
```

```python
import re


def regs(spec):
    spec = spec.strip()
    if spec.startswith("-"):
        spec = spec[1:]
    m = re.fullmatch(r"([vas])\[(\d+):(\d+)\]", spec)
    if m:
        return [f"{m.group(1)}{i}" for i in range(int(m.group(2)), int(m.group(3)) + 1)]
    m = re.fullmatch(r"([vas])(\d+)", spec)
    if m:
        return [spec]
    if spec in ("vcc", "exec", "m0", "scc"):
        return [spec]
    return []


def R(kind, base, n=1):
    return f"{kind}{base}" if n == 1 else f"{kind}[{base}:{base + n - 1}]"


TRANS = ("v_exp_f32", "v_rcp_f32", "v_log_f32", "v_rsq_f32", "v_sqrt_f32")


class Ins:
    __slots__ = ("text", "kind", "rd", "wr", "srcC", "srcAB", "op", "states", "tag", "data")

    def __init__(self, text, kind, rd=(), wr=(), srcC=(), srcAB=(), states=1, tag=None, data=()):
        self.text = text
        self.kind = kind
        self.rd = set(rd)
        self.wr = set(wr)
        self.srcC = set(srcC)
        self.srcAB = set(srcAB)
        self.op = text.split()[0] if text.split() else ""
        self.states = states
        self.tag = tag
        self.data = set(data)


class Stream:
    def __init__(self):
        self.ins = []

    def add(self, i):
        self.ins.append(i)
        return i

    def extend(self, l):
        for i in l:
            self.ins.append(i)

    def text(self):
        out = []
        for i in self.ins:
            if i.kind == "label":
                out.append(i.text)
            elif i.kind == "lgkmslot":
                continue
            else:
                out.append("    " + i.text)
        return "\n".join(out) + "\n"


def valu(op, dst, *src, extra_rd=(), extra_wr=(), mods=""):
    rd = []
    for s in src:
        rd += regs(s)
    wr = regs(dst)
    kind = "trans" if op in TRANS else "valu"
    if op.startswith("v_permlane") and op.endswith("swap_b32"):
        rd += regs(dst)
        wr += regs(src[0])
    if op in ("v_fmac_f32", "v_writelane_b32"):
        rd += regs(dst)
    t = f"{op} {dst}, " + ", ".join(src) + (" " + mods if mods else "")
    return Ins(t, kind, rd + list(extra_rd), wr + list(extra_wr))


def mfma16(d, a, b, c):
    return Ins(f"v_mfma_f32_16x16x32_bf16 {d}, {a}, {b}, {c}", "mfma", rd=regs(a) + regs(b) + regs(c), wr=regs(d),
               srcC=regs(c), srcAB=regs(a) + regs(b))


def salu(op, dst, *src, scc=True):
    rd = []
    for s in src:
        rd += regs(s)
    wr = regs(dst)
    if op.startswith("s_cmp") or op.startswith("s_bitcmp"):
        rd += regs(dst)
        wr = ["scc"]
    t = f"{op} {dst}" + ("".join(", " + s for s in src))
    return Ins(t, "salu", rd, wr)


def ds_read(op, dst, addr, off=0, tag=None):
    return Ins(f"{op} {dst}, {addr}" + (f" offset:{off}" if off else ""), "ds_read", rd=regs(addr), wr=regs(dst), tag=tag)


def ds_write(op, addr, src, off=0):
    return Ins(f"{op} {addr}, {src}" + (f" offset:{off}" if off else ""), "ds_write", rd=regs(addr) + regs(src), data=regs(src))


def dma(voff, srd, soff, off=0, tag=None, flags=""):
    return Ins(f"buffer_load_dwordx4 {voff}, {srd}, {soff} offen" + (f" offset:{off}" if off else "") + (" " + flags if flags else "") + " lds", "dma",
               rd=regs(voff) + regs(srd) + regs(soff) + ["m0"], tag=tag)


def vload(op, dst, voff, srd, soff, off=0, flags=""):
    return Ins(f"{op} {dst}, {voff}, {srd}, {soff} offen" + (f" offset:{off}" if off else "") + (" " + flags if flags else ""), "vmem_load",
               rd=regs(voff) + regs(srd) + regs(soff), wr=regs(dst))


def vstore(op, src, voff, srd, soff, off=0, flags=""):
    return Ins(f"{op} {src}, {voff}, {srd}, {soff} offen" + (f" offset:{off}" if off else "") + (" " + flags if flags else ""), "vmem_store",
               rd=regs(voff) + regs(srd) + regs(soff) + regs(src), data=regs(src))


def wait(vm=None, lgkm=None):
    t = "s_waitcnt"
    if vm is not None:
        t += f" vmcnt({vm})"
    if lgkm is not None:
        t += f" lgkmcnt({lgkm})"
    i = Ins(t, "wait")
    i.tag = (vm, lgkm)
    return i


def lgkmslot():
    return Ins("", "lgkmslot", states=0)


def nop(n=0):
    return Ins(f"s_nop {n}", "nop", states=n + 1)


def barrier():
    return Ins("s_barrier", "barrier")


def label(name):
    return Ins(f"{name}:", "label", states=0)


def raw(text, kind="salu", rd=(), wr=()):
    return Ins(text, kind, rd, wr)


def branch(op, target):
    return Ins(f"{op} {target}", "branch")


def resolve_lgkm(ins):
    n = len(ins)
    lds_idx = [k for k, i in enumerate(ins) if i.kind in ("ds_read", "ds_write")]
    order = {k: c for c, k in enumerate(lds_idx)}
    last_wr = {}
    need = [-1] * n
    for k, i in enumerate(ins):
        touched = i.rd | i.wr
        m = -1
        for r in touched:
            if r in last_wr:
                m = max(m, last_wr[r])
        need[k] = m
        for r in i.wr:
            last_wr.pop(r, None)
        if i.kind == "ds_read":
            for r in i.wr:
                last_wr[r] = order[k]
    issued = 0
    retired = 0
    slots = [k for k, i in enumerate(ins) if i.kind == "lgkmslot" or (i.kind == "wait" and i.tag[1] is not None)]
    nxt = {}
    for a, b in zip(slots, slots[1:] + [n]):
        nxt[a] = b
    for k, i in enumerate(ins):
        if i.kind == "lgkmslot":
            m = max([need[x] for x in range(k, nxt[k])] + [-1])
            if m >= retired:
                if m >= issued:
                    bad = [ins[x].text for x in range(k, nxt[k]) if need[x] >= issued]
                    raise RuntimeError(f"lgkm: consumer needs later-issued LDS op: {bad[:3]}")
                N = issued - (m + 1)
                N = min(N, 15)
                w = wait(lgkm=N)
                ins[k] = w
                retired = issued - N
        elif i.kind == "wait" and i.tag[1] is not None:
            retired = max(retired, issued - i.tag[1])
        else:
            if need[k] >= retired:
                raise RuntimeError(f"lgkm: uncovered consumer at {k}: {i.text}")
            if i.kind in ("ds_read", "ds_write"):
                issued += 1
    return ins


def check_vm_loads(ins):
    issued = 0
    retired = 0
    pend = {}
    for k, i in enumerate(ins):
        if i.kind == "wait" and i.tag[0] is not None:
            retired = max(retired, issued - i.tag[0])
        for r in (i.rd | i.wr):
            if r in pend and pend[r] >= retired:
                raise RuntimeError(f"vmcnt: uncovered consumer at {k}: {i.text}")
        if i.kind in ("vmem_load", "vmem_store", "dma"):
            if i.kind == "vmem_load":
                for r in i.wr:
                    pend[r] = issued
            issued += 1


def check_hazards(ins, window=24):
    errs = []
    real = [i for i in ins if i.kind not in ("label", "lgkmslot")]
    for k, c in enumerate(real):
        dist = 0
        for p in reversed(real[max(0, k - window):k]):
            req = 0
            vw = {r for r in p.wr if r[0] in "va"}
            sw = {r for r in p.wr if r[0] == "s" or r in ("vcc",)}
            if p.kind in ("valu", "trans"):
                if c.kind == "mfma" and vw & c.rd:
                    req = max(req, 2)
                if c.op.startswith("v_permlane") and vw & c.rd:
                    req = max(req, 2)
                if c.op in ("v_readfirstlane_b32", "v_readlane_b32") and vw & c.rd:
                    req = max(req, 1)
                if "dpp" in c.text or "row_" in c.text:
                    if vw & c.rd:
                        req = max(req, 2)
                if p.kind == "trans" and c.kind in ("valu", "mfma") and vw & c.rd:
                    req = max(req, 1)
                if sw & c.rd:
                    if c.kind in ("vmem_load", "vmem_store", "dma"):
                        req = max(req, 5)
                    if c.kind in ("valu", "trans"):
                        req = max(req, 2)
                    if c.op in ("v_readlane_b32", "v_writelane_b32"):
                        req = max(req, 4)
                if "exec" in p.wr and c.kind == "mfma":
                    req = max(req, 4)
            if p.kind == "mfma":
                if c.kind == "mfma":
                    if p.wr & c.srcAB:
                        req = max(req, 8)
                    if p.wr & c.srcC and p.wr != c.srcC:
                        req = max(req, 6)
                elif c.kind in ("valu", "trans", "ds_read", "ds_write", "vmem_load", "vmem_store", "dma"):
                    if p.wr & (c.rd | c.wr):
                        req = max(req, 8)
                    if c.kind in ("valu", "trans") and p.srcC & c.wr:
                        req = max(req, 3)
            if p.kind == "salu" and "m0" in p.wr and c.kind == "dma":
                req = max(req, 1)
            if p.kind in ("vmem_store",) and len(p.data) >= 3 and c.kind in ("valu", "trans") and p.data & c.wr:
                req = max(req, 2)
            if p.kind in ("vmem_store",) and len(p.data) >= 3 and p.data & c.wr:
                req = max(req, 1)
            if req > dist:
                errs.append(f"hazard: need {req} have {dist}: [{p.text}] -> [{c.text}]")
            dist += p.states
            if dist >= 20:
                break
    return errs
```

```python
import sys, math, struct
sys.path.insert(0, "gen")
from asmlib import *

NAME = "standalone__gqa_softmax__near_ridge_kernel"

opt = dict(stamps=0, name=NAME)
for a in sys.argv[2:]:
    k, v = a.split("=")
    opt[k] = int(v) if v.lstrip("-").isdigit() else v
NAME = opt["name"]

V_S, V_M, V_P, V_O, V_Q = 4, 20, 36, 100, 164
V_KA, V_VA, V_KD, V_VD = 228, 232, 236, 238
V_T = 242
A_O, A_KF, A_VF, A_L, A_ONE = 0, 64, 96, 128, 144
NAGPR = 148

S_SRDK, S_SRDV, S_SRDQ, S_SRDO = 12, 16, 20, 24
S_W, S_QH, S_KH = 28, 29, 30
S_LW = 31
S_SOFF = 32
S_QO = 36
S_C = 40
S_T = 44
S_ST = 60

NSLOT = 4
LDS_K, LDS_V, LDS_MISC = 0, 65536, 131072
LDS_BYTES = 131072 + 8192


def Sreg(n, r=None):
    b = V_S + (n % 4) * 4
    if n < 4:
        b = V_P + 32 + n * 4
    return R("v", b, 4) if r is None else R("v", b + r)


def Mreg(j, r=None):
    return R("v", V_M + j * 4, 4) if r is None else R("v", V_M + j * 4 + r)


def Preg(u, ks, j, r=None):
    b = V_P + (u & 1) * 32 + ks * 16 + j * 4
    return R("v", b, 4) if r is None else R("v", b + r)


def Oreg(i, j, r=None):
    if j < 2:
        k, b = "v", V_O + (i * 2 + j) * 4
    else:
        k, b = "a", A_O + (i * 2 + j - 2) * 4
    return R(k, b, 4) if r is None else R(k, b + r)


def Qreg(j, s, r=None):
    b = V_Q + (j * 4 + s) * 4
    return R("v", b, 4) if r is None else R("v", b + r)


def KF(blk, s):
    return R("a", A_KF + (blk & 1) * 16 + s * 4, 4)


def VF(dg, ks, e=None):
    b = A_VF + (dg & 3) * 8 + ks * 4
    return R("a", b, 4) if e is None else R("a", b + 2 * e, 2)


def Lreg(j, r=None):
    return R("a", A_L + j * 4, 4) if r is None else R("a", A_L + j * 4 + r)


def srd(b):
    return R("s", b, 4)


def f32(x):
    return "0x%08x" % struct.unpack("<I", struct.pack("<f", x))[0]


st = Stream()
A = st.add
nstamp = [0]


def stamp():
    if not opt["stamps"]:
        return
    k = nstamp[0]
    nstamp[0] += 1
    A(raw(f"s_memtime s[{S_ST + 4 * k}:{S_ST + 4 * k + 1}]"))
    A(raw(f"s_memrealtime s[{S_ST + 4 * k + 2}:{S_ST + 4 * k + 3}]"))
    A(wait(lgkm=0))


def k_read(blk, s):
    h = blk >> 1
    off = LDS_K + (h % NSLOT) * 16384 + (blk & 1) * 4096
    return ds_read("ds_read_b128", KF(blk, s), R("v", V_KA + s), off)


def v_read(dg, ks, e):
    u, i = dg >> 3, dg & 7
    h = u * 2 + (i >> 2)
    off = (h % NSLOT) * 16384 + ks * 4096 + e * 2048
    return ds_read("ds_read_b64_tr_b16", VF(dg, ks, e), R("v", V_VA + (i & 3)), off)


def k_dma_setup(h):
    u, half = h >> 1, h & 1
    return [salu("s_add_u32", "m0", R("s", S_LW), hex(LDS_K + (h % NSLOT) * 16384)),
            salu("s_mov_b32", R("s", S_SOFF), hex(u * 32768 + half * 8192))]


def k_dma(h, c):
    return dma(R("v", V_KD + (c & 1)), srd(S_SRDK), R("s", S_SOFF), c * 1024, tag=("K", h))


def v_dma_setup(h):
    u, half = h >> 1, h & 1
    return [salu("s_add_u32", "m0", R("s", S_LW), hex(LDS_V + (h % NSLOT) * 16384)),
            salu("s_mov_b32", R("s", S_SOFF), hex(u * 32768 + half * 128))]


def v_dma(h, c):
    return dma(R("v", V_VD + c), srd(S_SRDV), R("s", S_SOFF), c * 1024, tag=("V", h))


def vm_needed(tags):
    ops = [i for i in st.ins if i.kind in ("dma", "vmem_load", "vmem_store")]
    last = -1
    for k, i in enumerate(ops):
        if i.tag in tags:
            last = k
    if last < 0:
        return None
    return len(ops) - 1 - last


def exp_op(n, r):
    return valu("v_exp_f32", Sreg(n, r), Sreg(n, r))


def cvt_op(n, half):
    u, b, j = n >> 4, (n >> 2) & 3, n & 3
    dst = Preg(u, b >> 1, j, (b & 1) * 2 + half)
    return valu("v_cvt_pk_bf16_f32", dst, Sreg(n, 2 * half), Sreg(n, 2 * half + 1))


def qk_mfmas(n):
    blk, j = n >> 2, n & 3
    out = []
    for s in range(4):
        c = Sreg(n) if s else (Mreg(j) if n >= 4 else "0")
        out.append(mfma16(Sreg(n), KF(blk, s), Qreg(j, s), c))
    return out


def pv_mfmas(p):
    u, i = p >> 4, (p >> 1) & 7
    dg = p >> 1
    out = []
    for j in (2 * (p & 1), 2 * (p & 1) + 1):
        for ks in range(2):
            c = "0" if (u == 0 and ks == 0) else Oreg(i, j)
            out.append(mfma16(Oreg(i, j), VF(dg, ks), Preg(u, ks, j), c))
    return out


def sum_mfmas(u, j):
    out = []
    for ks in range(2):
        c = "0" if (u == 0 and ks == 0) else Lreg(j)
        out.append(mfma16(Lreg(j), R("a", A_ONE, 4), Preg(u, ks, j), c))
    return out


A(raw("s_cmp_ge_u32 s2, 256", wr=["scc"]))
A(branch("s_cbranch_scc1", "L_exit"))
A(raw("s_load_dwordx4 s[4:7], s[0:1], 0"))
A(raw("s_load_dwordx4 s[8:11], s[0:1], 16"))
if opt["stamps"]:
    A(raw("s_load_dwordx2 s[56:57], s[0:1], 40"))
A(valu("v_lshrrev_b32", "v1", "6", "v0"))
A(valu("v_and_b32", "v0", "63", "v0"))
A(valu("v_readfirstlane_b32", R("s", S_W), "v1"))
A(salu("s_and_b32", "s44", "s2", "7"))
A(salu("s_lshr_b32", "s45", "s2", "3"))
A(salu("s_lshl_b32", "s44", "s44", "3"))
A(salu("s_lshr_b32", "s46", "s45", "2"))
A(salu("s_add_u32", "s44", "s44", "s46"))
A(salu("s_and_b32", "s45", "s45", "3"))
A(salu("s_lshl_b32", "s46", "s44", "2"))
A(salu("s_add_u32", "s45", "s45", "s46"))
A(salu("s_lshl_b32", "s44", "s44", "19"))
A(salu("s_lshl_b32", "s45", "s45", "15"))
A(salu("s_and_b32", R("s", S_QH), R("s", S_W), "1"))
A(salu("s_lshr_b32", R("s", S_KH), R("s", S_W), "1"))
A(salu("s_lshl_b32", R("s", S_LW), R("s", S_W), "12"))
A(valu("v_and_b32", "v1", "15", "v0"))
A(valu("v_lshrrev_b32", "v2", "4", "v0"))
T = lambda k: R("v", V_T + k)
A(salu("s_lshl_b32", "s46", R("s", S_KH), "14"))
A(salu("s_lshl_b32", "s47", R("s", S_QH), "12"))
A(salu("s_add_u32", "s46", "s46", "s47"))
A(valu("v_lshlrev_b32", T(0), "1", "v2"))
A(valu("v_xor_b32", T(0), T(0), "v1"))
A(valu("v_lshlrev_b32", T(0), "4", T(0)))
A(valu("v_lshl_add_u32", T(0), "v2", "8", T(0)))
A(valu("v_add_u32", R("v", V_KD), "s46", T(0)))
A(valu("v_xor_b32", R("v", V_KD + 1), "0x80", R("v", V_KD)))
A(salu("s_lshl_b32", "s47", R("s", S_QH), "14"))
A(valu("v_lshlrev_b32", T(1), "8", "v1"))
A(valu("v_lshl_add_u32", T(1), "v2", "4", T(1)))
A(valu("v_add_u32", T(1), "s47", T(1)))
A(salu("s_lshl_b32", "s48", R("s", S_KH), "13"))
for j in range(4):
    A(salu("s_xor_b32", R("s", S_QO + j), "s48", hex(j * 4096)))
A(salu("s_lshl_b32", "s46", R("s", S_W), "13"))
A(valu("v_and_b32", T(2), "7", "v0"))
A(valu("v_lshlrev_b32", T(3), "1", "v2"))
A(valu("v_xor_b32", T(2), T(2), T(3)))
A(valu("v_lshlrev_b32", T(2), "4", T(2)))
A(valu("v_lshrrev_b32", T(3), "3", "v0"))
A(valu("v_lshl_add_u32", T(2), T(3), "8", T(2)))
A(valu("v_add_u32", R("v", V_VD), "s46", T(2)))
for c in range(1, 4):
    A(valu("v_add_u32", R("v", V_VD + c), hex(c * 1024), R("v", V_VD)))
A(wait(lgkm=0))
if opt["stamps"]:
    stamp()
for (b, p, offs, size) in ((S_SRDK, 6, "s44", 0x80000), (S_SRDQ, 4, "s45", 0x8000), (S_SRDV, 8, "s44", 0x80000), (S_SRDO, 10, "s45", 0x8000)):
    A(salu("s_add_u32", R("s", b), R("s", p), offs))
    A(salu("s_addc_u32", R("s", b + 1), R("s", p + 1), "0"))
    A(salu("s_mov_b32", R("s", b + 2), hex(size)))
    A(salu("s_mov_b32", R("s", b + 3), "0x20000"))
    if b == S_SRDK:
        st.extend(k_dma_setup(0))
        for c in range(4):
            A(k_dma(0, c))
    if b == S_SRDQ:
        for j in range(4):
            for s in range(4):
                i = vload("buffer_load_dwordx4", Qreg(j, s), T(1), srd(S_SRDQ), R("s", S_QO + j), s * 64)
                i.tag = ("Q", j * 4 + s)
                A(i)
for (kind, h) in (("K", 1), ("K", 2), ("V", 0), ("K", 3), ("V", 1)):
    st.extend(k_dma_setup(h) if kind == "K" else v_dma_setup(h))
    for c in range(4):
        A(k_dma(h, c) if kind == "K" else v_dma(h, c))
A(salu("s_lshl_b32", "s46", R("s", S_KH), "13"))
A(valu("v_and_b32", T(2), "7", "v1"))
A(valu("v_lshlrev_b32", T(2), "1", T(2)))
A(valu("v_xor_b32", T(2), T(2), "v2"))
A(valu("v_lshlrev_b32", T(2), "4", T(2)))
A(valu("v_lshl_add_u32", T(2), "v1", "8", T(2)))
A(valu("v_add_u32", R("v", V_KA), "s46", T(2)))
for s in range(1, 4):
    A(valu("v_xor_b32", R("v", V_KA + s), hex(s * 64), R("v", V_KA)))
A(salu("s_add_u32", "s46", "s46", hex(LDS_V)))
A(valu("v_lshrrev_b32", T(2), "2", "v0"))
A(valu("v_lshlrev_b32", T(2), "7", T(2)))
A(valu("v_bfe_u32", T(3), "v0", "3", "2"))
A(valu("v_lshl_add_u32", T(2), T(3), "5", T(2)))
A(valu("v_and_b32", T(3), "3", "v0"))
A(valu("v_lshl_add_u32", T(2), T(3), "3", T(2)))
A(valu("v_add_u32", R("v", V_VA), "s46", T(2)))
for s in range(1, 4):
    A(valu("v_xor_b32", R("v", V_VA + s), hex(s * 32), R("v", V_VA)))
A(valu("v_and_b32", T(2), "3", "v0"))
A(valu("v_cmp_eq_u32", "vcc", "0", T(2)))
A(valu("v_mov_b32", T(3), "0x3f803f80"))
A(nop(0))
A(valu("v_cndmask_b32", T(2), "0", T(3), "vcc"))
for r in range(4):
    A(valu("v_accvgpr_write_b32", R("a", A_ONE + r), T(2)))
cscale = math.log2(math.e) / math.sqrt(128.0)
A(salu("s_mov_b32", R("s", S_C), f32(cscale)))
A(salu("s_mov_b32", R("s", S_C + 1), f32(cscale)))
A(salu("s_mov_b32", "s42", "0xffff0000"))


def scale_q(j, s):
    A(wait(vm=vm_needed({("Q", j * 4 + s)})))
    for r in range(0, 4, 2):
        for k in range(2):
            q = Qreg(j, s, r + k)
            A(valu("v_lshlrev_b32", T(4 + 2 * k), "16", q))
            A(valu("v_and_b32", T(5 + 2 * k), "s42", q))
        for k in range(2):
            A(valu("v_pk_mul_f32", R("v", V_T + 4 + 2 * k, 2), R("v", V_T + 4 + 2 * k, 2), R("s", S_C, 2)))
        for k in range(2):
            A(valu("v_cvt_pk_bf16_f32", Qreg(j, s, r + k), T(4 + 2 * k), T(5 + 2 * k)))


for s in range(4):
    scale_q(0, s)
A(barrier())
for s in range(4):
    A(k_read(0, s))
for j in range(1, 4):
    for s in range(4):
        scale_q(j, s)
stamp()


def max_chain(j):
    t, u = T(4 + 2 * (j & 1)), T(5 + 2 * (j & 1))
    o = [valu("v_max3_f32", t, Sreg(j, 0), Sreg(j, 1), Sreg(j, 2)),
         valu("v_max_f32", t, t, Sreg(j, 3)),
         valu("v_mov_b32", u, t), nop(1),
         valu("v_permlane16_swap_b32", t, u),
         valu("v_max_f32", t, t, u),
         valu("v_mov_b32", u, t), nop(1),
         valu("v_permlane32_swap_b32", t, u),
         valu("v_max_f32", t, t, u)]
    for r in range(4):
        o.append(valu("v_sub_f32", Mreg(j, r), "0", t))
    for r in range(4):
        o.append(valu("v_sub_f32", Sreg(j, r), Sreg(j, r), t))
    return o


def dma_for_step(n):
    if n < 4:
        return [], None
    t, e = (n - 4) >> 3, (n - 4) & 7
    if e < 4:
        h = t + NSLOT
        if h > 31:
            return [], None
        return (k_dma_setup(h) if e == 0 else []), k_dma(h, e)
    h = t + NSLOT - 2
    if h > 31:
        return [], None
    return (v_dma_setup(h) if e == 4 else []), v_dma(h, e - 4)


def sync_before(n):
    if n < 4 or (n - 4) % 8:
        return
    t = (n - 4) >> 3
    if t > 32:
        return
    A(wait(vm=vm_needed({("K", t + 1), ("V", t - 1)}), lgkm=0))
    A(barrier())


def k_read_for_step(n):
    blk = (n >> 2) + 1
    return k_read(blk, n & 3) if blk < 64 else None


def v_reads_for_step(n):
    p = n - 16 + 4
    if p < 0 or p > 255:
        return []
    return [v_read(p >> 1, p & 1, 0), v_read(p >> 1, p & 1, 1)]


def emit(mf, gaps):
    for k, m in enumerate(mf):
        A(m)
        for f in gaps[k]:
            if f is not None:
                A(f)


A(lgkmslot())
for n in range(4):
    mf = qk_mfmas(n)
    gaps = [[k_read_for_step(n)], [], [], []]
    if n >= 2:
        ch = max_chain(n - 2)
        gaps[0] += [nop(0)] + ch[0:4]
        gaps[1] += ch[4:8]
        gaps[2] += ch[8:13]
        gaps[3] += ch[13:]
    emit(mf, gaps)
backlog = []
for j in range(4):
    backlog += [exp_op(j, 0), exp_op(j, 1), exp_op(j, 2), cvt_op(j, 0), exp_op(j, 3), nop(0), cvt_op(j, 1)]
backlog = [b for b in backlog]
pre4 = max_chain(2)
post4 = max_chain(3)

for n in range(4, 272):
    sync_before(n)
    setup, d = dma_for_step(n)
    kr = k_read_for_step(n)
    vr = v_reads_for_step(n)
    ex = [exp_op(n - 1, r) for r in range(4)] if 5 <= n <= 256 else [None] * 4
    c_a = cvt_op(n - 2, 1) if 6 <= n <= 257 else None
    c_b = cvt_op(n - 1, 0) if 5 <= n <= 256 else None
    su = setup + [None, None]
    vr = vr + [None, None]
    if n < 16:
        mf = qk_mfmas(n)
        if n % 4 == 0:
            A(lgkmslot())
        extra = []
        if n == 4:
            extra = pre4
        elif n == 5:
            extra = post4
        else:
            k = 3 if n < 14 else 0
            extra, backlog = backlog[:k], backlog[k:]
            if n >= 14:
                extra = [nop(1)]
        gaps = [[kr, su[0], su[1]] + extra + [c_a], [vr[0], ex[0], ex[1]], [vr[1], ex[2], c_b], [d, ex[3]]]
        if n == 15:
            gaps[3] += backlog
        emit(mf, gaps)
    elif n < 256:
        mf = qk_mfmas(n) + pv_mfmas(n - 16)
        gaps = [[ex[0]], [kr, c_a], [ex[1]], [vr[0]], [su[0], ex[2]], [vr[1], c_b], [su[1], ex[3]], [d]]
        if n % 2 == 1:
            gaps[6] = [lgkmslot()] + gaps[6]
        if n % 4 == 3:
            mf += sum_mfmas((n >> 4) - 1, (n >> 2) & 3)
            gaps += [[], []]
        if n == 16:
            A(lgkmslot())
        emit(mf, gaps)
    else:
        mf = pv_mfmas(n - 16)
        if n == 256:
            gaps = [[vr[0], c_a, ex[0]], [vr[1], ex[1], ex[2]], [c_b, ex[3]], [cvt_op(255, 1), nop(1)]]
        else:
            gaps = [[vr[0]], [vr[1]], [], []]
        if n % 2 == 1:
            gaps[3] = gaps[3] + [lgkmslot()]
        if n % 4 == 3:
            mf += sum_mfmas(15, (n >> 2) & 3)
            gaps += [[], []]
        emit(mf, gaps)
stamp()

A(nop(7))
A(barrier())
A(salu("s_lshl_b32", "s44", R("s", S_W), "14"))
A(salu("s_xor_b32", "s45", "s44", "0x8000"))
A(valu("v_lshlrev_b32", T(0), "4", "v0"))
A(valu("v_add_u32", T(1), "s45", T(0)))
A(valu("v_add_u32", T(0), "s44", T(0)))
A(valu("v_mov_b32", R("v", V_S + 0), Mreg(2, 0)))
A(valu("v_mov_b32", R("v", V_S + 1), Mreg(3, 0)))
A(valu("v_accvgpr_read_b32", R("v", V_S + 2), Lreg(2, 0)))
A(valu("v_accvgpr_read_b32", R("v", V_S + 3), Lreg(3, 0)))
A(salu("s_lshl_b32", "s46", R("s", S_W), "10"))
A(salu("s_add_u32", "s46", "s46", hex(LDS_V)))
A(salu("s_xor_b32", "s47", "s46", "0x800"))
A(valu("v_lshlrev_b32", T(2), "4", "v0"))
A(valu("v_add_u32", T(3), "s47", T(2)))
A(valu("v_add_u32", T(2), "s46", T(2)))
A(ds_write("ds_write_b128", T(2), R("v", V_S, 4)))
for t in range(16):
    A(ds_write("ds_write_b128", T(0), R("a", A_O + t * 4, 4), t * 1024))
A(valu("v_accvgpr_read_b32", R("v", V_S + 8), Lreg(0, 0)))
A(valu("v_accvgpr_read_b32", R("v", V_S + 9), Lreg(1, 0)))
A(salu("s_lshl_b32", "s47", R("s", S_QH), "14"))
A(valu("v_lshlrev_b32", T(4), "8", "v1"))
A(valu("v_and_b32", T(5), "1", "v2"))
A(valu("v_lshl_add_u32", T(4), T(5), "5", T(4)))
A(valu("v_lshrrev_b32", T(5), "1", "v2"))
A(valu("v_lshl_add_u32", T(4), T(5), "4", T(4)))
A(valu("v_add_u32", T(4), "s47", T(4)))
A(wait(lgkm=0))
A(barrier())
A(ds_read("ds_read_b128", R("v", V_S + 4, 4), T(3)))
XO = V_P
for t in range(16):
    A(ds_read("ds_read_b128", R("v", XO + t * 4, 4), T(1), t * 1024))
A(wait(lgkm=15))
A(lgkmslot())
for j in range(2):
    no, nx, lo, lx = Mreg(j, 0), R("v", V_S + 4 + j), R("v", V_S + 8 + j), R("v", V_S + 6 + j)
    t0, t1, t2 = T(6), T(7), T(8)
    A(valu("v_min_f32", t0, no, nx))
    A(valu("v_sub_f32", t1, t0, no))
    A(valu("v_sub_f32", t2, t0, nx))
    A(valu("v_exp_f32", t1, t1))
    A(valu("v_exp_f32", t2, t2))
    A(valu("v_mul_f32", t0, lo, t1))
    A(valu("v_fmac_f32", t0, lx, t2))
    A(valu("v_rcp_f32", t0, t0))
    A(nop(0))
    A(valu("v_mul_f32", R("v", V_M + 8 + 2 * j), t1, t0))
    A(valu("v_mul_f32", R("v", V_M + 12 + 2 * j), t2, t0))
    A(valu("v_mov_b32", R("v", V_M + 9 + 2 * j), R("v", V_M + 8 + 2 * j)))
    A(valu("v_mov_b32", R("v", V_M + 13 + 2 * j), R("v", V_M + 12 + 2 * j)))
for m in range(4):
    for j in range(2):
        A(lgkmslot())
        pk = V_Q + (m * 2 + j) * 4
        for ii in range(2):
            i = 2 * m + ii
            ob = V_O + (i * 2 + j) * 4
            xb = XO + (i * 2 + j) * 4
            for h in range(2):
                A(valu("v_pk_mul_f32", R("v", ob + 2 * h, 2), R("v", ob + 2 * h, 2), R("v", V_M + 8 + 2 * j, 2)))
            for h in range(2):
                A(valu("v_pk_fma_f32", R("v", ob + 2 * h, 2), R("v", xb + 2 * h, 2), R("v", V_M + 12 + 2 * j, 2), R("v", ob + 2 * h, 2)))
            for h in range(2):
                A(valu("v_cvt_pk_bf16_f32", R("v", pk + 2 * ii + h), R("v", ob + 2 * h), R("v", ob + 2 * h + 1)))
        A(nop(1))
        A(valu("v_permlane16_swap_b32", R("v", pk), R("v", pk + 2)))
        A(valu("v_permlane16_swap_b32", R("v", pk + 1), R("v", pk + 3)))
        A(vstore("buffer_store_dwordx4", R("v", pk, 4), T(4), srd(S_SRDO), R("s", S_QO + j), m * 64))
if opt["stamps"]:
    A(wait(vm=0))
    stamp()
    A(salu("s_mov_b32", "s58", "0x10000000"))
    A(salu("s_mov_b32", "s59", "0x20000"))
    A(valu("v_mov_b32", "v1", "0"))
    for k in range(nstamp[0]):
        A(valu("v_writelane_b32", "v1", R("s", S_ST + 4 * k), str(2 * k)))
        A(valu("v_writelane_b32", "v1", R("s", S_ST + 4 * k + 2), str(2 * k + 1)))
    A(salu("s_lshl_b32", "s44", "s2", "2"))
    A(salu("s_add_u32", "s44", "s44", R("s", S_W)))
    A(salu("s_lshl_b32", "s44", "s44", "8"))
    A(valu("v_lshlrev_b32", "v2", "2", "v0"))
    A(vstore("buffer_store_dword", "v1", "v2", "s[56:59]", "s44"))
A(label("L_exit"))
A(raw("s_endpgm"))

resolve_lgkm(st.ins)
check_vm_loads(st.ins)
errs = check_hazards(st.ins)
for e in errs[:40]:
    print(e, file=sys.stderr)
if errs:
    print(f"{len(errs)} hazards", file=sys.stderr)
    sys.exit(1)

head = f"""; GQA attention forward, B=8 Hq=32 Hkv=8 Sq=128 Sk=2048 D=128, bf16 (generated by gen/gen.py)
; @launch grid=(256,1,1) block=(256,1,1) lds={LDS_BYTES}
.amdgcn_target "amdgcn-amd-amdhsa--gfx950"
.text
.globl {NAME}
.p2align 8
.type {NAME},@function
{NAME}:
"""
tail = f""".section .rodata,"a"
.p2align 6
.amdhsa_kernel {NAME}
  .amdhsa_next_free_vgpr {256 + NAGPR}
  .amdhsa_next_free_sgpr 96
  .amdhsa_accum_offset 256
  .amdhsa_group_segment_fixed_size 0
  .amdhsa_kernarg_size 48
  .amdhsa_user_sgpr_count 2
  .amdhsa_user_sgpr_kernarg_segment_ptr 1
  .amdhsa_system_sgpr_workgroup_id_x 1
.end_amdhsa_kernel
"""
open(sys.argv[1], "w").write(head + st.text() + tail)
print(f"wrote {sys.argv[1]}: {len(st.ins)} instructions")
```

```python
from mbgen import HEAD
import sys
TAIL2 = """
    s_waitcnt vmcnt(0) lgkmcnt(0)
    s_mul_i32 s17, s2, {wpb}
    s_add_u32 s17, s17, s16
    s_lshl_b32 s17, s17, 8
    v_lshlrev_b32 v3, 2, v2
    buffer_store_dword v12, v3, s[28:31], s17 offen
    s_waitcnt vmcnt(0)
    s_endpgm
.section .rodata,"a"
.p2align 6
.amdhsa_kernel mb_kernel
  .amdhsa_next_free_vgpr {nvgpr}
  .amdhsa_next_free_sgpr 96
  .amdhsa_accum_offset {accum}
  .amdhsa_group_segment_fixed_size 0
  .amdhsa_kernarg_size 48
  .amdhsa_user_sgpr_count 2
  .amdhsa_user_sgpr_kernarg_segment_ptr 1
  .amdhsa_system_sgpr_workgroup_id_x 1
.end_amdhsa_kernel
"""
def stamp(i):
    return f"""    s_memtime s[40:41]
    s_memrealtime s[44:45]
    s_waitcnt lgkmcnt(0)
    v_writelane_b32 v12, s40, {2*i}
    v_writelane_b32 v12, s44, {2*i+1}
"""
def kernel2(pre, body, nseg, niter, grid=256, block=256, lds=0, nvgpr=512, accum=256):
    s = HEAD.format(grid=grid, block=block, lds=lds) + pre + "    v_mov_b32 v12, 0\n    s_waitcnt vmcnt(0) lgkmcnt(0)\n    s_barrier\n"
    for i in range(nseg):
        s += stamp(i)
        s += f"    s_mov_b32 s50, {niter}\nL_loop{i}:\n" + body + f"    s_sub_u32 s50, s50, 1\n    s_cmp_lg_u32 s50, 0\n    s_cbranch_scc1 L_loop{i}\n"
    s += stamp(nseg)
    return s + TAIL2.format(wpb=block//64, nvgpr=nvgpr, accum=accum)

def loadregs(nv=128, srd="s[32:35]"):
    s = "    v_lshlrev_b32 v3, 4, v2\n"
    for i in range(0, nv, 4):
        s += f"    buffer_load_dwordx4 v[{16+i}:{19+i}], v3, {srd}, 0 offen offset:{(i//4)*1024 % 4096}\n"
        if (i//4) % 4 == 3:
            s += "    v_add_u32 v3, 4096, v3\n"
    s += "    s_waitcnt vmcnt(0)\n"
    return s
def zero_acc(n):
    return "".join(f"    v_accvgpr_write_b32 a{i}, 0\n" for i in range(n))

if __name__ == "__main__":
    out = {}
    def mf32(a, b, acc):
        return f"    v_mfma_f32_32x32x16_bf16 a[{acc}:{acc+15}], v[{a}:{a+3}], v[{b}:{b+3}], a[{acc}:{acc+15}]\n"
    def mf16(a, b, acc):
        return f"    v_mfma_f32_16x16x32_bf16 a[{acc}:{acc+3}], v[{a}:{a+3}], v[{b}:{b+3}], a[{acc}:{acc+3}]\n"
    body = "".join(mf32(16 + (i % 8) * 4, 48 + (i % 8) * 4, (i % 8) * 16) for i in range(32))
    out["p_bare32"] = kernel2(loadregs() + zero_acc(128), body, 16, 2)
    out["p_bare32_x4"] = kernel2(loadregs() + zero_acc(128), body, 16, 8)
    body = "".join(mf16(16 + (i % 8) * 4, 48 + (i % 8) * 4, (i % 32) * 4) for i in range(64))
    out["p_bare16"] = kernel2(loadregs() + zero_acc(128), body, 16, 2)
    body = "".join(mf32(16 + (i // 2 % 8) * 4, 48 + (i % 8) * 4, (i % 8) * 16) for i in range(32))
    out["p_32_A2"] = kernel2(loadregs() + zero_acc(128), body, 16, 2)
    body = "".join(mf32(16 + (i % 8) * 4, 48 + (i // 2 % 8) * 4, (i % 8) * 16) for i in range(32))
    out["p_32_B2"] = kernel2(loadregs() + zero_acc(128), body, 16, 2)
    body = "".join(mf32(16, 48 + (i % 8) * 4, (i % 8) * 16) for i in range(32))
    out["p_32_Aall"] = kernel2(loadregs() + zero_acc(128), body, 16, 2)
    body = "".join(mf32(16 + (i % 8) * 4, 48, (i % 8) * 16) for i in range(32))
    out["p_32_Ball"] = kernel2(loadregs() + zero_acc(128), body, 16, 2)
    body = "".join(mf32(16 + (i % 8) * 4, 48 + (i % 8) * 4, (i // 8) * 16) for i in range(32))
    out["p_32_chain"] = kernel2(loadregs() + zero_acc(128), body, 16, 2)
    body = "".join(mf16(16 + (i // 4 % 8) * 4, 48 + (i % 8) * 4, (i % 32) * 4) for i in range(64))
    out["p_16_A4"] = kernel2(loadregs() + zero_acc(128), body, 16, 2)
    body = "".join(mf16(16 + (i % 8) * 4, 48 + (i // 4 % 8) * 4, (i % 32) * 4) for i in range(64))
    out["p_16_B4"] = kernel2(loadregs() + zero_acc(128), body, 16, 2)
    body = "".join(mf16(16 + (i % 8) * 4, 48 + (i % 8) * 4, (i // 4) * 4) for i in range(64))
    out["p_16_chain"] = kernel2(loadregs() + zero_acc(128), body, 16, 2)
    for nop in [1, 3, 7]:
        body = "".join(mf32(16 + (i % 8) * 4, 48 + (i % 8) * 4, (i % 8) * 16) + f"    s_nop 7\n    s_nop {nop}\n" for i in range(32))
        out[f"p_32_nop{nop}"] = kernel2(loadregs() + zero_acc(128), body, 16, 2)
    for k, v in out.items():
        open(f"{k}.s", "w").write(v)
    print(" ".join(f"mb/{k}.s" for k in out))
```

```python
HEAD = """; @launch grid=({grid},1,1) block=({block},1,1) lds={lds}
.amdgcn_target "amdgcn-amd-amdhsa--gfx950"
.text
.globl mb_kernel
.p2align 8
.type mb_kernel,@function
mb_kernel:
    s_load_dwordx4 s[4:7], s[0:1], 0      ; q, k
    s_load_dwordx4 s[8:11], s[0:1], 16    ; v, out
    s_load_dwordx4 s[12:15], s[0:1], 32
    s_waitcnt lgkmcnt(0)
    s_mov_b32 s20, s6
    s_mov_b32 s21, s7
    s_mov_b32 s22, 0x2000000
    s_mov_b32 s23, 0x20000
    s_mov_b32 s24, s8
    s_mov_b32 s25, s9
    s_mov_b32 s26, 0x2000000
    s_mov_b32 s27, 0x20000
    s_mov_b32 s28, s14
    s_mov_b32 s29, s15
    s_mov_b32 s30, 0x10000000
    s_mov_b32 s31, 0x20000
    s_mov_b32 s32, s4
    s_mov_b32 s33, s5
    s_mov_b32 s34, 0x800000
    s_mov_b32 s35, 0x20000
    v_lshrrev_b32 v1, 6, v0
    s_nop 0
    v_readfirstlane_b32 s16, v1
    v_and_b32 v2, 63, v0                  ; lane
"""
STAMP0 = """
    s_waitcnt vmcnt(0) lgkmcnt(0)
    s_barrier
    s_memtime s[40:41]
    s_memrealtime s[44:45]
    s_waitcnt lgkmcnt(0)
"""
TAIL = """
    s_waitcnt vmcnt(0) lgkmcnt(0)
    s_memtime s[42:43]
    s_memrealtime s[46:47]
    s_waitcnt lgkmcnt(0)
    s_mul_i32 s17, s2, {wpb}
    s_add_u32 s17, s17, s16
    s_lshl_b32 s17, s17, 5
    v_mov_b32 v4, s40
    v_mov_b32 v5, s41
    v_mov_b32 v6, s42
    v_mov_b32 v7, s43
    v_mov_b32 v8, s44
    v_mov_b32 v9, s45
    v_mov_b32 v10, s46
    v_mov_b32 v11, s47
    v_mov_b32 v3, 0
    s_mov_b64 exec, 1
    buffer_store_dwordx4 v[4:7], v3, s[28:31], s17 offen
    buffer_store_dwordx4 v[8:11], v3, s[28:31], s17 offen offset:16
    s_waitcnt vmcnt(0)
    s_endpgm
.section .rodata,"a"
.p2align 6
.amdhsa_kernel mb_kernel
  .amdhsa_next_free_vgpr {nvgpr}
  .amdhsa_next_free_sgpr 96
  .amdhsa_accum_offset {accum}
  .amdhsa_group_segment_fixed_size 0
  .amdhsa_kernarg_size 48
  .amdhsa_user_sgpr_count 2
  .amdhsa_user_sgpr_kernarg_segment_ptr 1
  .amdhsa_system_sgpr_workgroup_id_x 1
.end_amdhsa_kernel
"""
def kernel(pre, body, grid=256, block=256, lds=0, nvgpr=512, accum=256):
    return HEAD.format(grid=grid, block=block, lds=lds) + pre + STAMP0 + body + TAIL.format(wpb=block//64, nvgpr=nvgpr, accum=accum)
```

```python
from gen2 import TAIL2, stamp
from mbgen import HEAD
out = {}
def stores(pat, flags, op="dwordx4"):
    s = HEAD.format(grid=256, block=256, lds=0)
    s += """
    s_mov_b32 s36, s10
    s_mov_b32 s37, s11
    s_mov_b32 s38, 0x800000
    s_mov_b32 s39, 0x20000
    s_lshl_b32 s52, s2, 15
    s_lshl_b32 s54, s16, 13
    s_add_u32 s52, s52, s54
    v_mov_b32 v12, 0
    v_and_b32 v4, 15, v2
    v_lshrrev_b32 v5, 4, v2
"""
    if pat == "seg64":
        s += "    v_lshlrev_b32 v6, 8, v4\n    v_lshl_add_u32 v6, v5, 4, v6\n"
        offs = [(m * 64, j * 4096) for m in range(4) for j in range(2)]
    elif pat == "seg64b":
        s += "    v_lshlrev_b32 v6, 8, v4\n    v_lshl_add_u32 v6, v5, 4, v6\n"
        offs = [(m * 64, j * 4096) for j in range(2) for m in range(4)]
    elif pat == "seg64c":
        s += "    v_lshrrev_b32 v6, 2, v2\n    v_lshlrev_b32 v6, 8, v6\n    v_and_b32 v7, 3, v2\n    v_lshl_add_u32 v6, v7, 4, v6\n"
        offs = [(m * 64, j * 4096) for j in range(2) for m in range(4)]
    elif pat == "seg128":
        s += "    v_lshrrev_b32 v6, 3, v2\n    v_lshlrev_b32 v6, 8, v6\n    v_and_b32 v7, 7, v2\n    v_lshl_add_u32 v6, v7, 4, v6\n"
        offs = [(m * 128 + (j & 1) * 2048, (j >> 1) * 4096) for j in range(4) for m in range(2)]
    elif pat == "lin":
        s += "    v_lshlrev_b32 v6, 4, v2\n"
        offs = [((k & 3) * 1024, (k >> 2) * 4096) for k in range(8)]
    s += "    s_add_u32 s53, s52, 4096\n    s_barrier\n"
    s += stamp(0)
    for k, (o, so) in enumerate(offs):
        s += f"    buffer_store_dwordx4 v[{16+4*k}:{19+4*k}], v6, s[36:39], {'s52' if so == 0 else 's53'} offen offset:{o} {flags}\n"
    s += stamp(1)
    s += "    s_waitcnt vmcnt(0)\n" + stamp(2)
    return s + TAIL2.format(wpb=4, nvgpr=512, accum=256)
for pat in ("seg64", "seg64b", "seg64c", "seg128", "lin"):
    for fl in ("", "sc0 sc1", "nt", "sc0 sc1 nt"):
        out[f"wr_{pat}_{fl.replace(' ', '')}"] = stores(pat, fl)
for kk, v in out.items():
    open(f"{kk}.s", "w").write(v)
print(" ".join(f"mb/{kk}.s" for kk in out))
```
